```python
import torch

def _softmax(x, axis=-1):
    return torch.softmax(x, dim=axis)

def _gelu(x):
    return torch.nn.functional.gelu(x, approximate='tanh')

def _silu(x):
    return torch.nn.functional.silu(x)

def _sigmoid(x):
    return torch.sigmoid(x)

def _layernorm(x, axis=-1, eps=1e-05):
    m = x.mean(dim=axis, keepdim=True)
    v = x.var(dim=axis, keepdim=True, unbiased=False)
    return (x - m) / torch.sqrt(v + eps)

def _scatter_add(tgt, idx, src, axis=0):
    return tgt.clone().index_add_(axis, idx, src)

def _segment_sum(src, seg, n):
    out = torch.zeros((n,) + src.shape[1:], dtype=src.dtype)
    return out.index_add_(0, seg, src)

def _pad(x, pw):
    flat = tuple((v for pair in reversed(pw) for v in pair))
    return torch.nn.functional.pad(x, flat)
kernel_name = 'recurrent_scan__memory_aug_recurrent_mem_tr__mixer_channel_mlp__prompt'

def setup_inputs():

    _w = lambda a: (lambda t: t.to(torch.bfloat16) if t.is_floating_point() else t)(torch.as_tensor(a))

    def _A_setup():
        B, S, Dm = (1, 2048, 512)
        H, Dh = (32, 128)
        M, seg = (8, 32)
        seg = min(seg, S)
        S = S // seg * seg
        return {'x': _w((lambda *s: torch.randn(*s, dtype=torch.bfloat16) * 0.05)(B, S, Dm)), 'mem0': _w((lambda *s: torch.randn(*s, dtype=torch.bfloat16) * 0.8)(B, M, Dm)), 'Wq': _w((lambda *s: torch.randn(*s, dtype=torch.bfloat16) * 0.8)(Dm, H, Dh) * Dm ** (-0.5)), 'Wk': _w((lambda *s: torch.randn(*s, dtype=torch.bfloat16) * 0.8)(Dm, H, Dh) * Dm ** (-0.5)), 'Wv': _w((lambda *s: torch.randn(*s, dtype=torch.bfloat16) * 0.8)(Dm, H, Dh) * Dm ** (-0.5)), 'Wo': _w((lambda *s: torch.randn(*s, dtype=torch.bfloat16) * 0.8)(H, Dh, Dm) * (H * Dh) ** (-0.5)), 'seg_len': seg}
    _A_in = _A_setup()

    def _B_setup():
        B, S, D, F = (1, 2048, 512, 1376)
        return {'x': _w((lambda *s: torch.randn(*s, dtype=torch.bfloat16) * 0.05)(B, S, D)), 'w1': _w((lambda *s: torch.randn(*s, dtype=torch.bfloat16) * 0.8)(D, F) * D ** (-0.5)), 'b1': _w((lambda *s: torch.randn(*s, dtype=torch.bfloat16) * 0.4)(F)), 'w2': _w((lambda *s: torch.randn(*s, dtype=torch.bfloat16) * 0.2)(F, D) * F ** (-0.5)), 'b2': _w((lambda *s: torch.randn(*s, dtype=torch.bfloat16) * 0.2)(D))}
    _B_in = _B_setup()
    return {'A_x': _A_in['x'], 'A_mem0': _A_in['mem0'], 'A_Wq': _A_in['Wq'], 'A_Wk': _A_in['Wk'], 'A_Wv': _A_in['Wv'], 'A_Wo': _A_in['Wo'], 'A_seg_len': _A_in['seg_len'], 'B_x': _B_in['x'], 'B_w1': _B_in['w1'], 'B_b1': _B_in['b1'], 'B_w2': _B_in['w2'], 'B_b2': _B_in['b2']}

def reference(A_x, A_mem0, A_Wq, A_Wk, A_Wv, A_Wo, A_seg_len, B_x, B_w1, B_b1, B_w2, B_b2):

    def _A_ref(x, mem0, Wq, Wk, Wv, Wo, seg_len):
        B, S, Dm = x.shape
        H, Dh = (Wq.shape[1], Wq.shape[2])
        M = mem0.shape[1]
        scale = Dh ** (-0.5)
        n_seg = S // seg_len
        L = M + seg_len
        idx = torch.arange(L)
        mask = (idx[:, None] < M) | (idx[:, None] >= idx[None, :])
        mem = mem0
        outs = []
        for s in range(n_seg):
            xs = x[:, s * seg_len:(s + 1) * seg_len, :].clone()
            h = torch.concatenate([mem, xs], axis=1)
            q = torch.einsum('btd,dhe->bhte', h, Wq)
            k = torch.einsum('btd,dhe->bhte', h, Wk)
            v = torch.einsum('btd,dhe->bhte', h, Wv)
            scores = torch.einsum('bhqe,bhke->bhqk', q, k) * scale
            scores = torch.where(mask[None, None], scores, -1000000000.0)
            p = _softmax(scores, axis=-1)
            o = torch.einsum('bhqk,bhke->bhqe', p, v)
            o = torch.einsum('bhte,hed->btd', o, Wo)
            mem = o[:, :M, :].clone()
            outs.append(o[:, M:, :])
        return torch.concatenate(outs, axis=1)

    def _B_ref(x, w1, b1, w2, b2):
        y = _layernorm(x, axis=-1)
        h = _gelu(torch.einsum('bsd,df->bsf', y, w1) + b1)
        return torch.einsum('bsf,fd->bsd', h, w2) + b2
    x = A_x
    xn = _layernorm(x, axis=-1)
    s = _A_ref(xn, A_mem0, A_Wq, A_Wk, A_Wv, A_Wo, A_seg_len)
    g = _silu(_B_ref(xn, B_w1, B_b1, B_w2, B_b2))
    return x + s * g
```

```python
class Asm:
    def __init__(self):
        self.lines=[]
        self.lbl=0
    def __call__(self, s):
        for ln in s.strip('\n').split('\n'):
            self.lines.append('    '+ln.strip() if not ln.strip().endswith(':') else ln.strip())
    def label(self, base='L'):
        self.lbl+=1
        return f"{base}_{self.lbl}"
    def text(self):
        return '\n'.join(self.lines)+'\n'

def srd(a, d, base, nbytes):
    a(f"""s_mov_b32 s{d}, s{base}
s_and_b32 s{d+1}, s{base+1}, 0xffff
s_mov_b32 s{d+2}, {nbytes}
s_mov_b32 s{d+3}, 0x00020000""")

def srd_off(a, d, base, off, nbytes):
    a(f"""s_add_u32 s{d}, s{base}, {off}
s_addc_u32 s{d+1}, s{base+1}, 0
s_and_b32 s{d+1}, s{d+1}, 0xffff
s_mov_b32 s{d+2}, {nbytes}
s_mov_b32 s{d+3}, 0x00020000""")

def kdesc(name, vgpr, sgpr=102, accum=None, lds=0):
    if accum is None: accum=((vgpr+3)//4)*4
    return f""".amdhsa_kernel {name}
  .amdhsa_next_free_vgpr {vgpr}
  .amdhsa_next_free_sgpr {sgpr}
  .amdhsa_accum_offset {accum}
  .amdhsa_group_segment_fixed_size 0
  .amdhsa_kernarg_size 120
  .amdhsa_user_sgpr_count 2
  .amdhsa_user_sgpr_kernarg_segment_ptr 1
  .amdhsa_system_sgpr_workgroup_id_x 1
.end_amdhsa_kernel
"""
```

```python
from asmlib import *
from layout import *

def red64(a, v, tmp, sA, sB):
    for off in (0x041F,0x081F,0x101F,0x201F,0x401F):
        a(f"ds_swizzle_b32 v{tmp}, v{v} offset:{off}\ns_waitcnt lgkmcnt(0)\nv_add_f32 v{v}, v{v}, v{tmp}")
    a(f"s_nop 1\nv_readlane_b32 s{sA}, v{v}, 0\nv_readlane_b32 s{sB}, v{v}, 32\ns_nop 1\nv_mov_b32 v{v}, s{sA}\ns_nop 1\nv_add_f32 v{v}, s{sB}, v{v}")

def gen_k0(a):
    a("k0_kernel:")
    a("""s_load_dwordx16 s[8:23], s[0:1], 0
s_load_dwordx8 s[24:31], s[0:1], 64
s_load_dwordx2 s[32:33], s[0:1], 112
v_lshrrev_b32 v1, 6, v0
v_and_b32 v2, 63, v0
v_readfirstlane_b32 s3, v1
s_waitcnt lgkmcnt(0)
s_cmp_ge_u32 s2, %d
s_cbranch_scc1 k0_end
s_cmp_ge_u32 s2, %d
s_cbranch_scc1 k0_ln
s_lshl_b32 s4, s2, 2
s_add_u32 s4, s4, s3
s_mov_b32 s40, 0""" % (K0_WG_RELAY+512, K0_WG_RELAY))
    a("""s_cmp_ge_u32 s4, 12288
s_cbranch_scc1 k0_d1
s_lshr_b32 s5, s4, 12
s_and_b32 s6, s4, 4095
s_lshr_b32 s38, s6, 4
s_lshl_b32 s38, s38, 4
s_and_b32 s37, s6, 15
s_lshl_b32 s37, s37, 5
s_mov_b32 s36, 8192
s_mov_b32 s41, 4194304
s_mov_b32 s34, s12
s_mov_b32 s35, s13
s_cmp_eq_u32 s5, 1
s_cselect_b32 s34, s14, s34
s_cselect_b32 s35, s15, s35
s_cmp_eq_u32 s5, 2
s_cselect_b32 s34, s16, s34
s_cselect_b32 s35, s17, s35
s_lshl_b32 s39, s4, 10
s_add_u32 s39, s39, %d
s_branch k0_go""" % WS_WQKV)
    a("k0_d1:")
    a("""s_cmp_ge_u32 s4, 16384
s_cbranch_scc1 k0_d2
s_sub_u32 s5, s4, 12288
s_lshr_b32 s6, s5, 7
s_lshl_b32 s37, s6, 7
s_and_b32 s6, s5, 3
s_lshl_b32 s6, s6, 5
s_add_u32 s37, s37, s6
s_bfe_u32 s38, s5, 0x50002
s_lshl_b32 s38, s38, 4
s_mov_b32 s36, 1024
s_mov_b32 s41, 4194304
s_mov_b32 s34, s18
s_mov_b32 s35, s19
s_mov_b32 s40, 1
s_lshl_b32 s39, s5, 10
s_add_u32 s39, s39, %d
s_branch k0_go""" % WS_WOF)
    a("k0_d2:")
    a("""s_cmp_ge_u32 s4, 20480
s_cbranch_scc1 k0_d3
s_sub_u32 s5, s4, 16384
s_lshr_b32 s38, s5, 7
s_lshl_b32 s38, s38, 4
s_and_b32 s37, s5, 127
s_lshl_b32 s37, s37, 5
s_mov_b32 s36, 1024
s_mov_b32 s41, 4194304
s_mov_b32 s34, s18
s_mov_b32 s35, s19
s_lshl_b32 s39, s5, 10
s_add_u32 s39, s39, %d
s_branch k0_go""" % WS_WOG)
    a("k0_d3:")
    a("""s_cmp_ge_u32 s4, 21856
s_cbranch_scc1 k0_d4
s_sub_u32 s5, s4, 20480
s_lshr_b32 s38, s5, 4
s_lshl_b32 s38, s38, 4
s_and_b32 s37, s5, 15
s_lshl_b32 s37, s37, 5
s_mov_b32 s36, 2752
s_mov_b32 s41, %d
s_mov_b32 s34, s24
s_mov_b32 s35, s25
s_lshl_b32 s39, s5, 10
s_add_u32 s39, s39, %d
s_branch k0_go""" % (512*1376*2, WS_W1F))
    a("k0_d4:")
    a("""s_sub_u32 s5, s4, 21856
s_mul_i32 s6, s5, 1525
s_lshr_b32 s6, s6, 16
s_lshl_b32 s38, s6, 4
s_mul_i32 s6, s6, 43
s_sub_u32 s37, s5, s6
s_lshl_b32 s37, s37, 5
s_mov_b32 s36, 1024
s_mov_b32 s41, %d
s_mov_b32 s34, s28
s_mov_b32 s35, s29
s_lshl_b32 s39, s5, 10
s_add_u32 s39, s39, %d""" % (512*1376*2, WS_W2F))
    a("k0_go:")
    srd(a, 44, 34, "s41")
    srd(a, 48, 32, WS_BYTES)
    a("""v_lshrrev_b32 v3, 4, v2
v_and_b32 v4, 15, v2
s_sub_u32 s5, 3, s40
v_lshlrev_b32 v3, s5, v3
v_add_u32 v3, s37, v3
v_mul_lo_u32 v3, v3, s36
v_add_u32 v4, s38, v4
v_lshlrev_b32 v4, 1, v4
v_add_u32 v3, v3, v4
s_mul_i32 s6, s40, 12""")
    for j in range(8):
        if j<4: a(f"s_mul_i32 s7, s36, {j}")
        else: a(f"s_add_u32 s7, s6, {j}\ns_mul_i32 s7, s7, s36")
        a(f"buffer_load_ushort v{8+j}, v3, s[44:47], s7 offen")
    a("s_waitcnt vmcnt(0)")
    for j in range(4):
        a(f"v_lshl_or_b32 v{16+j}, v{9+2*j}, 16, v{8+2*j}")
    a("""v_lshlrev_b32 v5, 4, v2
v_add_u32 v5, s39, v5
buffer_store_dwordx4 v[16:19], v5, s[48:51], 0 offen
s_endpgm""")
    a("k0_ln:")
    a("s_sub_u32 s4, s2, %d\ns_lshl_b32 s5, s4, 2\ns_add_u32 s5, s5, s3\ns_lshl_b32 s5, s5, 10" % K0_WG_RELAY)
    srd(a, 44, 8, 2097152)
    srd(a, 48, 32, WS_BYTES)
    a("""v_lshlrev_b32 v3, 4, v2
v_add_u32 v3, s5, v3
buffer_load_dwordx4 v[4:7], v3, s[44:47], 0 offen
s_waitcnt vmcnt(0)""")
    for i in range(4):
        a(f"v_lshlrev_b32 v{8+2*i}, 16, v{4+i}\nv_and_b32 v{9+2*i}, 0xffff0000, v{4+i}")
    a("v_add_f32 v16, v8, v9")
    for i in range(10,16): a(f"v_add_f32 v16, v16, v{i}")
    red64(a, 16, 17, 6, 7)
    a("v_mul_f32 v16, 0x3b000000, v16")
    for i in range(8,16): a(f"v_sub_f32 v{i}, v{i}, v16")
    a("v_mul_f32 v16, v8, v8")
    for i in range(9,16): a(f"v_fmac_f32 v16, v{i}, v{i}")
    red64(a, 16, 17, 6, 7)
    a("v_mul_f32 v16, 0x3b000000, v16\nv_add_f32 v16, 0x3727c5ac, v16\nv_sqrt_f32 v16, v16\ns_nop 0\nv_rcp_f32 v16, v16\ns_nop 0")
    for i in range(8,16): a(f"v_mul_f32 v{i}, v{i}, v16")
    for i in range(4): a(f"v_cvt_pk_bf16_f32 v{4+i}, v{8+2*i}, v{9+2*i}")
    a("v_add_u32 v3, %d, v3\nbuffer_store_dwordx4 v[4:7], v3, s[48:51], 0 offen" % WS_XN)
    a("""v_mov_b32 v8, 0
v_mov_b32 v9, 0
v_mov_b32 v10, 0
v_mov_b32 v11, 0
s_lshl_b32 s6, s4, 12
v_lshlrev_b32 v12, 4, v0
v_add_u32 v12, s6, v12
v_add_u32 v13, %d, v12
buffer_store_dwordx4 v[8:11], v13, s[48:51], 0 offen
s_cmp_ge_u32 s4, 20
s_cbranch_scc1 k0_end
v_add_u32 v13, %d, v12
buffer_store_dwordx4 v[8:11], v13, s[48:51], 0 offen""" % (WS_EX1, WS_EX2))
    a("k0_end:\ns_endpgm")
```

```python
from asmlib import *
from layout import *

def gen_k2(a):
    a("k2_kernel:")
    a("""s_cmp_ge_u32 s2, 256
s_cbranch_scc1 k2_end
s_load_dwordx2 s[32:33], s[0:1], 112
v_lshrrev_b32 v1, 6, v0
v_and_b32 v2, 63, v0
v_readfirstlane_b32 s3, v1
s_and_b32 s4, s2, 7
s_lshr_b32 s5, s2, 3
s_lshl_b32 s6, s4, 8
s_lshl_b32 s7, s3, 6
s_add_u32 s6, s6, s7
s_mul_i32 s8, s5, 24
s_waitcnt lgkmcnt(0)""")
    srd(a, 48, 32, WS_BYTES)
    a("""v_lshrrev_b32 v3, 4, v2
v_and_b32 v4, 15, v2
v_add_u32 v5, s6, v4
v_lshlrev_b32 v5, 10, v5
v_lshl_add_u32 v5, v3, 4, v5
v_lshlrev_b32 v6, 4, v2""")
    for rt in range(4):
        a(f"v_add_u32 v7, {rt*16384}, v5")
        for kt in range(16):
            r=(rt*16+kt)*4
            a(f"buffer_load_dwordx4 a[{r}:{r+3}], v7, s[48:51], 0 offen offset:{kt*64}")
    def loadB(buf, sreg):
        for kt in range(16):
            r=buf+kt*4
            if kt%4==0: a(f"s_add_u32 s10, s{sreg}, {kt//4*4096}")
            a(f"buffer_load_dwordx4 v[{r}:{r+3}], v6, s[48:51], s10 offen offset:{(kt%4)*1024}")
    a("s_mov_b32 s9, 0")
    a("s_lshl_b32 s11, s8, 14\ns_add_u32 s11, s11, %d" % WS_WQKV)
    loadB(64, 11)
    lp=a.label('k2_loop')
    a(f"{lp}:")
    for half,(cur,nxt) in enumerate(((64,128),(128,64))):
        a("s_add_u32 s11, s11, 16384")
        a("s_waitcnt vmcnt(0)") if False else None
        loadB(nxt, 11)
        a("s_waitcnt vmcnt(16)")
        a("s_add_u32 s12, s8, s9")
        lv=a.label('k2_v'); le=a.label('k2_e')
        a(f"s_cmp_ge_u32 s12, 512\ns_cbranch_scc1 {lv}")
        for kt in range(16):
            for rt in range(4):
                c = "0" if kt==0 else f"v[{16+rt*4}:{19+rt*4}]"
                ar=(rt*16+kt)*4
                a(f"v_mfma_f32_16x16x32_bf16 v[{16+rt*4}:{19+rt*4}], v[{cur+kt*4}:{cur+kt*4+3}], a[{ar}:{ar+3}], {c}")
        a("""s_lshr_b32 s13, s12, 8
s_lshl_b32 s13, s13, 24
s_and_b32 s14, s12, 255
s_lshl_b32 s14, s14, 5
s_add_u32 s13, s13, s14
s_add_u32 s13, s13, %d
v_add_u32 v8, s6, v4
v_lshlrev_b32 v8, 13, v8
v_lshl_add_u32 v8, v3, 3, v8
s_nop 7""" % WS_QX)
        for rt in range(4):
            a(f"v_cvt_pk_bf16_f32 v{32+rt*2}, v{16+rt*4}, v{17+rt*4}\nv_cvt_pk_bf16_f32 v{33+rt*2}, v{18+rt*4}, v{19+rt*4}")
            a(f"buffer_store_dwordx2 v[{32+rt*2}:{33+rt*2}], v8, s[48:51], s13 offen offset:0" if rt==0 else
              f"v_add_u32 v8, {16*8192}, v8\nbuffer_store_dwordx2 v[{32+rt*2}:{33+rt*2}], v8, s[48:51], s13 offen")
        a(f"s_branch {le}")
        a(f"{lv}:")
        for kt in range(16):
            for rt in range(4):
                c = "0" if kt==0 else f"v[{16+rt*4}:{19+rt*4}]"
                ar=(rt*16+kt)*4
                a(f"v_mfma_f32_16x16x32_bf16 v[{16+rt*4}:{19+rt*4}], a[{ar}:{ar+3}], v[{cur+kt*4}:{cur+kt*4+3}], {c}")
        a("""s_sub_u32 s13, s12, 512
s_lshl_b32 s13, s13, 16
s_lshl_b32 s14, s6, 1
s_add_u32 s13, s13, s14
s_add_u32 s13, s13, %d
v_lshlrev_b32 v8, 12, v4
v_lshl_add_u32 v8, v3, 3, v8
s_nop 7""" % WS_VXT)
        for rt in range(4):
            a(f"v_cvt_pk_bf16_f32 v{32+rt*2}, v{16+rt*4}, v{17+rt*4}\nv_cvt_pk_bf16_f32 v{33+rt*2}, v{18+rt*4}, v{19+rt*4}")
            a(f"buffer_store_dwordx2 v[{32+rt*2}:{33+rt*2}], v8, s[48:51], s13 offen offset:{rt*32}")
        a(f"{le}:")
        a("s_add_u32 s9, s9, 1")
    a(f"s_cmp_lt_u32 s9, 24\ns_cbranch_scc1 {lp}")
    a("k2_end:\ns_endpgm")
```

```python
from asmlib import *
from layout import *
LDS=150*1024
L_MEM=0; L_QK=8320; L_VMT=12544; L_O=14592; L_RED=16768; L_WO=20480
EX2ID=WS_EX2+0x8000

def wreg(f):
    return (f"a[{4*f}:{4*f+3}]" if f<64 else f"v[{128+4*(f-64)}:{131+4*(f-64)}]")

def st2(a, ins):
    l1=a.label('sl'); l2=a.label('sl')
    a(f"s_cmp_eq_u32 s60, 0\ns_cbranch_scc0 {l1}")
    for i in ins: a(i)
    a(f"s_branch {l2}\n{l1}:")
    for i in ins: a(i+" sc1")
    a(f"{l2}:")

def gen_k3(a):
    a("k3_kernel:")
    a("""s_cmp_ge_u32 s2, 256
s_cbranch_scc1 k3_end
s_load_dwordx2 s[32:33], s[0:1], 112
s_load_dwordx2 s[34:35], s[0:1], 8
v_lshrrev_b32 v1, 6, v0
v_and_b32 v2, 63, v0
v_readfirstlane_b32 s3, v1
s_waitcnt lgkmcnt(0)""")
    srd(a, 48, 32, WS_BYTES)
    srd(a, 52, 34, 8192)
    a("""v_lshrrev_b32 v3, 4, v2
v_and_b32 v4, 15, v2
s_and_b32 s4, s2, 7
s_cmp_lg_u32 s4, 0
s_cbranch_scc1 k3_mlp
s_lshr_b32 s5, s2, 3
s_getreg_b32 s6, hwreg(HW_REG_XCC_ID)
s_and_b32 s6, s6, 15
s_add_u32 s6, s6, 1
v_mov_b32 v5, s6
s_lshl_b32 s7, s5, 2
v_mov_b32 v6, s7
v_add_u32 v6, %d, v6
buffer_store_dword v5, v6, s[48:51], 0 offen sc1
v_lshlrev_b32 v6, 2, v2
v_and_b32 v6, 127, v6
v_add_u32 v6, %d, v6""" % (EX2ID,EX2ID))
    lp=a.label('idp')
    a(f"""{lp}:
buffer_load_dword v5, v6, s[48:51], 0 offen sc1
s_waitcnt vmcnt(0)
v_cmp_eq_u32 vcc, 0, v5
s_cmp_lg_u64 vcc, 0
s_cbranch_scc1 {lp}
v_cmp_ne_u32 vcc, s6, v5
s_cmp_lg_u64 vcc, 0
s_cselect_b32 s60, 1, 0""")
    a("s_mul_i32 s8, s3, 6\nv_lshlrev_b32 v6, 4, v2")
    for i in range(6):
        a(f"s_add_u32 s9, s8, {i}\ns_lshr_b32 s10, s9, 3\ns_lshl_b32 s10, s10, 8\ns_and_b32 s11, s9, 7\ns_add_u32 s10, s10, s11\ns_lshl_b32 s11, s5, 3\ns_add_u32 s10, s10, s11\ns_lshl_b32 s10, s10, 14\ns_add_u32 s10, s10, {WS_WQKV}")
        for kt in range(16):
            if kt%4==0: a(f"s_add_u32 s11, s10, {kt//4*4096}")
            a(f"buffer_load_dwordx4 {wreg(i*16+kt)}, v6, s[48:51], s11 offen offset:{(kt%4)*1024}")
    a("s_lshl_b32 s10, s5, 17\ns_add_u32 s10, s10, %d\nv_lshlrev_b32 v7, 4, v0" % WS_WOF)
    for c in range(4):
        for i in range(8):
            a(f"s_add_u32 s11, s10, {(c*8+i)*4096}\nbuffer_load_dwordx4 v[{64+4*i}:{67+4*i}], v7, s[48:51], s11 offen")
        a("s_waitcnt vmcnt(0)")
        a(f"v_add_u32 v10, {L_WO+c*32768}, v7")
        for i in range(8):
            a(f"ds_write_b128 v10, v[{64+4*i}:{67+4*i}] offset:{i*4096}")
    a("""v_lshrrev_b32 v8, 6, v0
v_mul_u32_u24 v8, 2080, v8
v_lshl_add_u32 v8, v2, 4, v8
v_add_u32 v8, %d, v8
v_lshlrev_b32 v9, 4, v2
v_lshl_add_u32 v9, v1, 11, v9
buffer_load_dwordx4 v[64:67], v9, s[52:55], 0 offen
buffer_load_dwordx4 v[68:71], v9, s[52:55], 0 offen offset:1024
s_waitcnt vmcnt(0)
ds_write_b128 v8, v[64:67]
ds_write_b128 v8, v[68:71] offset:1040
s_mov_b32 s12, 0
v_and_b32 v5, 7, v2""" % L_MEM)
    loop=a.label('k3_loop')
    a(f"{loop}:")
    a("""s_lshl_b32 s13, s12, 5
v_add_u32 v8, s13, v4
v_lshlrev_b32 v8, 13, v8
v_lshl_add_u32 v8, v3, 4, v8
s_lshl_b32 s14, s5, 8
s_add_u32 s14, s14, %d""" % WS_KX)
    for t in range(2):
        for kt in range(4):
            r=32+(t*4+kt)*4
            a(f"s_add_u32 s15, s14, {t*16*8192}\nbuffer_load_dwordx4 v[{r}:{r+3}], v8, s[48:51], s15 offen offset:{kt*64}")
    a("""s_lshl_b32 s15, s3, 5
s_lshl_b32 s16, s5, 7
s_add_u32 s15, s15, s16
v_add_u32 v8, s15, v4
v_lshlrev_b32 v8, 12, v8
v_lshl_add_u32 v8, v3, 3, v8
s_lshl_b32 s16, s12, 6
s_add_u32 s16, s16, %d""" % WS_VXT)
    for e2 in range(2):
        a(f"s_add_u32 s17, s16, {e2*65536}\nbuffer_load_dwordx2 v[{16+4*e2}:{17+4*e2}], v8, s[48:51], s17 offen\nbuffer_load_dwordx2 v[{18+4*e2}:{19+4*e2}], v8, s[48:51], s17 offen offset:32")
    a("s_waitcnt lgkmcnt(0)\ns_barrier")
    a("v_mul_u32_u24 v8, 1040, v5\nv_lshl_add_u32 v8, v3, 4, v8\nv_add_u32 v8, %d, v8" % L_MEM)
    for kt in range(16): a(f"ds_read_b128 v[{64+4*kt}:{67+4*kt}], v8 offset:{kt*64}")
    a("s_waitcnt lgkmcnt(0)")
    ends=a.label('qe')
    for w in range(4):
        nx=a.label('qw')
        a(f"s_cmp_lg_u32 s3, {w}\ns_cbranch_scc1 {nx}")
        for i in range(6):
            t=w*6+i; mtx=t//8; tin=t%8
            for kt in range(16):
                c="0" if kt==0 else "v[8:11]"
                m=f"v[{64+4*kt}:{67+4*kt}]"
                if mtx<2: a(f"v_mfma_f32_16x16x32_bf16 v[8:11], {wreg(i*16+kt)}, {m}, {c}")
                else: a(f"v_mfma_f32_16x16x32_bf16 v[8:11], {m}, {wreg(i*16+kt)}, {c}")
            a("s_nop 7\nv_cvt_pk_bf16_f32 v12, v8, v9\nv_cvt_pk_bf16_f32 v13, v10, v11")
            if mtx<2:
                a(f"v_mul_u32_u24 v14, 528, v4\nv_lshl_add_u32 v14, v3, 3, v14\nv_cmp_gt_u32 vcc, 8, v4\ns_and_saveexec_b64 s[20:21], vcc\nds_write_b64 v14, v[12:13] offset:{L_QK+mtx*256+tin*32}")
                if mtx==1:
                    a(f"v_lshlrev_b32 v14, 13, v4\nv_lshl_add_u32 v14, v3, 3, v14\ns_lshl_b32 s22, s12, 16\ns_lshl_b32 s23, s5, 8\ns_add_u32 s22, s22, s23\ns_add_u32 s22, s22, {WS_KM+tin*32}\nbuffer_store_dwordx2 v[12:13], v14, s[48:51], s22 offen")
                a("s_mov_b64 exec, -1")
            else:
                a(f"v_lshlrev_b32 v14, 4, v4\nv_lshl_add_u32 v14, v3, 3, v14\nv_cmp_gt_u32 vcc, 2, v3\ns_and_saveexec_b64 s[20:21], vcc\nds_write_b64 v14, v[12:13] offset:{L_VMT+tin*256}\ns_lshl_b32 s22, s12, 16\ns_lshl_b32 s23, s5, 11\ns_add_u32 s22, s22, s23\ns_add_u32 s22, s22, {WS_VMT+tin*256}\nbuffer_store_dwordx2 v[12:13], v14, s[48:51], s22 offen\ns_mov_b64 exec, -1")
        a(f"s_branch {ends}\n{nx}:")
    a(f"{ends}:")
    a("s_cmp_eq_u32 s12, 63\ns_cbranch_scc1 k3_end")
    a("s_waitcnt lgkmcnt(0)\ns_barrier")
    a("v_mul_u32_u24 v8, 528, v5\nv_lshl_add_u32 v8, v3, 4, v8\nv_add_u32 v8, %d, v8" % L_QK)
    for kt in range(4): a(f"ds_read_b128 v[{64+4*kt}:{67+4*kt}], v8 offset:{kt*64}\nds_read_b128 v[{80+4*kt}:{83+4*kt}], v8 offset:{256+kt*64}")
    a("v_lshlrev_b32 v8, 4, v4\nv_lshl_add_u32 v8, v3, 3, v8\ns_lshl_b32 s15, s3, 9\nv_add_u32 v8, s15, v8\nds_read_b64 v[24:25], v8 offset:%d\nds_read_b64 v[28:29], v8 offset:%d\nv_mov_b32 v26, 0\nv_mov_b32 v27, 0\nv_mov_b32 v30, 0\nv_mov_b32 v31, 0" % (L_VMT, L_VMT+256))
    a("s_waitcnt vmcnt(0) lgkmcnt(0)\nv_cmp_gt_u32 vcc, 2, v3\ns_nop 1\nv_cndmask_b32 v24, 0, v24, vcc\nv_cndmask_b32 v25, 0, v25, vcc\nv_cndmask_b32 v28, 0, v28, vcc\nv_cndmask_b32 v29, 0, v29, vcc")
    for t in range(3):
        for kt in range(4):
            kf = f"v[{80+4*kt}:{83+4*kt}]" if t==0 else f"v[{32+((t-1)*4+kt)*4}:{35+((t-1)*4+kt)*4}]"
            c="0" if kt==0 else f"v[{96+4*t}:{99+4*t}]"
            a(f"v_mfma_f32_16x16x32_bf16 v[{96+4*t}:{99+4*t}], {kf}, v[{64+4*kt}:{67+4*kt}], {c}")
    a("s_nop 7\nv_cmp_gt_u32 vcc, 2, v3\nv_mov_b32 v8, 0xff800000\ns_nop 1")
    for r in range(4): a(f"v_cndmask_b32 v{96+r}, v8, v{96+r}, vcc")
    a("v_max_f32 v9, v96, v97")
    for r in range(98,108): a(f"v_max_f32 v9, v9, v{r}")
    a("v_xor_b32 v10, 16, v2\nv_lshlrev_b32 v10, 2, v10\nv_xor_b32 v11, 32, v2\nv_lshlrev_b32 v11, 2, v11")
    a("ds_bpermute_b32 v12, v10, v9\ns_waitcnt lgkmcnt(0)\nv_max_f32 v9, v9, v12\nds_bpermute_b32 v12, v11, v9\ns_waitcnt lgkmcnt(0)\nv_max_f32 v9, v9, v12")
    a("s_mov_b32 s24, 0x3e029e1e")
    for r in range(96,108): a(f"v_sub_f32 v{r}, v{r}, v9\nv_mul_f32 v{r}, s24, v{r}\nv_exp_f32 v{r}, v{r}")
    a("s_nop 0\nv_add_f32 v9, v96, v97")
    for r in range(98,108): a(f"v_add_f32 v9, v9, v{r}")
    a("ds_bpermute_b32 v12, v10, v9\ns_waitcnt lgkmcnt(0)\nv_add_f32 v9, v9, v12\nds_bpermute_b32 v12, v11, v9\ns_waitcnt lgkmcnt(0)\nv_add_f32 v9, v9, v12\nv_rcp_f32 v9, v9\ns_nop 0")
    for r in range(96,108): a(f"v_mul_f32 v{r}, v{r}, v9")
    a("""v_cvt_pk_bf16_f32 v108, v100, v101
v_cvt_pk_bf16_f32 v109, v102, v103
v_cvt_pk_bf16_f32 v110, v104, v105
v_cvt_pk_bf16_f32 v111, v106, v107
v_cvt_pk_bf16_f32 v112, v96, v97
v_cvt_pk_bf16_f32 v113, v98, v99
v_mov_b32 v114, 0
v_mov_b32 v115, 0
s_nop 1""")
    for e2 in range(2):
        a(f"v_mfma_f32_16x16x32_bf16 v[{116+4*e2}:{119+4*e2}], v[{16+4*e2}:{19+4*e2}], v[108:111], 0\nv_mfma_f32_16x16x32_bf16 v[{116+4*e2}:{119+4*e2}], v[{24+4*e2}:{27+4*e2}], v[112:115], v[{116+4*e2}:{119+4*e2}]")
    a("s_nop 7\ns_nop 1\nv_mul_u32_u24 v8, 272, v4\nv_lshl_add_u32 v8, v3, 3, v8\ns_lshl_b32 s15, s3, 6\nv_add_u32 v8, s15, v8\nv_cmp_gt_u32 vcc, 8, v4\ns_and_saveexec_b64 s[20:21], vcc")
    for e2 in range(2):
        a(f"v_cvt_pk_bf16_f32 v12, v{116+4*e2}, v{117+4*e2}\nv_cvt_pk_bf16_f32 v13, v{118+4*e2}, v{119+4*e2}\nds_write_b64 v8, v[12:13] offset:{L_O+e2*32}")
    a("s_mov_b64 exec, -1\ns_waitcnt lgkmcnt(0)\ns_barrier")
    a("v_mul_u32_u24 v8, 272, v5\nv_lshl_add_u32 v8, v3, 3, v8\nv_add_u32 v8, %d, v8" % L_O)
    for k in range(4): a(f"ds_read_b64 v[{64+4*k}:{65+4*k}], v8 offset:{k*64}\nds_read_b64 v[{66+4*k}:{67+4*k}], v8 offset:{k*64+32}")
    a("s_lshl_b32 s15, s3, 15\ns_add_u32 s15, s15, %d\nv_lshlrev_b32 v9, 4, v2\nv_add_u32 v9, s15, v9" % L_WO)
    a("s_and_b32 s16, s12, 1\ns_lshl_b32 s16, s16, 5\ns_add_u32 s16, s16, s5\ns_lshl_b32 s16, s16, 15\ns_lshl_b32 s17, s3, 10\ns_add_u32 s16, s16, s17\ns_add_u32 s16, s16, %d\ns_add_u32 s18, s12, 1" % WS_EX1)
    a("v_lshlrev_b32 v10, 12, v4\nv_lshl_add_u32 v10, v3, 5, v10")
    for nt in range(8):
        for k in range(4): a(f"ds_read_b128 v[{80+4*k}:{83+4*k}], v9 offset:{(nt*4+k)*1024}")
        a("s_waitcnt lgkmcnt(0)")
        for k in range(4):
            c="0" if k==0 else "v[96:99]"
            a(f"v_mfma_f32_16x16x32_bf16 v[96:99], v[{80+4*k}:{83+4*k}], v[{64+4*k}:{67+4*k}], {c}")
        a("s_nop 7\nv_mov_b32 v100, v96\nv_mov_b32 v101, s18\nv_mov_b32 v102, v97\nv_mov_b32 v103, s18\nv_mov_b32 v104, v98\nv_mov_b32 v105, s18\nv_mov_b32 v106, v99\nv_mov_b32 v107, s18\nv_cmp_gt_u32 vcc, 8, v4\ns_and_saveexec_b64 s[20:21], vcc")
        st2(a,[f"buffer_store_dwordx4 v[100:103], v10, s[48:51], s16 offen offset:{nt*128}", f"buffer_store_dwordx4 v[104:107], v10, s[48:51], s16 offen offset:{nt*128+16}"])
        a("s_mov_b64 exec, -1\ns_nop 1")
    a("v_lshrrev_b32 v8, 3, v2\nv_lshlrev_b32 v8, 12, v8\nv_lshl_add_u32 v8, v5, 4, v8\ns_and_b32 s16, s12, 1\ns_lshl_b32 s16, s16, 5\ns_lshl_b32 s17, s3, 3\ns_add_u32 s16, s16, s17\ns_lshl_b32 s16, s16, 15\ns_lshl_b32 s17, s5, 7\ns_add_u32 s16, s16, s17\ns_add_u32 s16, s16, %d" % WS_EX1)
    p1=a.label('p1')
    a(f"{p1}:")
    for i in range(8): a(f"s_add_u32 s17, s16, {i*32768}\nbuffer_load_dwordx4 v[{64+4*i}:{67+4*i}], v8, s[48:51], s17 offen sc1")
    a("s_waitcnt vmcnt(0)\ns_mov_b64 s[22:23], -1")
    for i in range(8): a(f"v_cmp_eq_u32 vcc, s18, v{65+4*i}\ns_and_b64 s[22:23], s[22:23], vcc\nv_cmp_eq_u32 vcc, s18, v{67+4*i}\ns_and_b64 s[22:23], s[22:23], vcc")
    a(f"s_cmp_eq_u64 s[22:23], -1\ns_cbranch_scc0 {p1}")
    a("v_add_f32 v20, v64, v68\nv_add_f32 v21, v66, v70")
    for i in range(2,8): a(f"v_add_f32 v20, v20, v{64+4*i}\nv_add_f32 v21, v21, v{66+4*i}")
    a("v_lshlrev_b32 v11, 3, v0\nds_write_b64 v11, v[20:21] offset:%d\ns_waitcnt lgkmcnt(0)\ns_barrier" % L_RED)
    a("v_lshlrev_b32 v11, 3, v2")
    for i in range(4): a(f"ds_read_b64 v[{12+2*i}:{13+2*i}], v11 offset:{L_RED+512*i}")
    a("s_waitcnt lgkmcnt(0)\nv_add_f32 v12, v12, v14\nv_add_f32 v13, v13, v15\nv_add_f32 v12, v12, v16\nv_add_f32 v13, v13, v17\nv_add_f32 v12, v12, v18\nv_add_f32 v13, v13, v19\nv_cvt_pk_bf16_f32 v12, v12, v13\nv_mov_b32 v13, s18")
    a("s_and_b32 s16, s12, 1\ns_lshl_b32 s16, s16, 5\ns_add_u32 s17, s16, s5\ns_lshl_b32 s17, s17, 9\ns_add_u32 s17, s17, %d" % WS_EX2)
    sk=a.label('sk')
    a(f"s_cmp_lg_u32 s3, 0\ns_cbranch_scc1 {sk}")
    st2(a,["buffer_store_dwordx2 v[12:13], v11, s[48:51], s17 offen"])
    a(f"{sk}:")
    a("v_lshlrev_b32 v8, 6, v0\ns_lshl_b32 s16, s16, 9\ns_add_u32 s16, s16, %d" % WS_EX2)
    p2=a.label('p2')
    a(f"{p2}:")
    for i in range(4): a(f"buffer_load_dwordx4 v[{64+4*i}:{67+4*i}], v8, s[48:51], s16 offen offset:{16*i} sc1")
    a("s_waitcnt vmcnt(0)\ns_mov_b64 s[22:23], -1")
    for i in range(4): a(f"v_cmp_eq_u32 vcc, s18, v{65+4*i}\ns_and_b64 s[22:23], s[22:23], vcc\nv_cmp_eq_u32 vcc, s18, v{67+4*i}\ns_and_b64 s[22:23], s[22:23], vcc")
    a(f"s_cmp_eq_u64 s[22:23], -1\ns_cbranch_scc0 {p2}")
    a("v_mov_b32 v65, v66\nv_mov_b32 v66, v68\nv_mov_b32 v67, v70\nv_mov_b32 v68, v72\nv_mov_b32 v69, v74\nv_mov_b32 v70, v76\nv_mov_b32 v71, v78")
    a("v_and_b32 v8, 7, v0\nv_mul_u32_u24 v8, 1040, v8\nv_lshrrev_b32 v9, 3, v0\nv_lshl_add_u32 v8, v9, 5, v8\nv_add_u32 v8, %d, v8\nds_write_b128 v8, v[64:67]\nds_write_b128 v8, v[68:71] offset:16" % L_MEM)
    a("s_add_u32 s12, s12, 1\ns_branch %s" % loop)
    a("k3_mlp:")
    import k3m; k3m.gen(a)
    a("k3_end:\ns_endpgm")
```

```python
from asmlib import *
from layout import *
def gen(a):
    a("""s_lshr_b32 s5, s2, 3
s_sub_u32 s5, s2, s5
s_sub_u32 s5, s5, 1
s_cmp_ge_u32 s5, 128
s_cbranch_scc1 k3_end
s_load_dwordx2 s[36:37], s[0:1], 72
s_load_dwordx2 s[38:39], s[0:1], 88
s_waitcnt lgkmcnt(0)""")
    srd(a,56,36,2752); srd(a,60,38,1024)
    a("s_lshl_b32 s5, s5, 4\nv_add_u32 v5, s5, v4\nv_lshlrev_b32 v5, 10, v5\nv_lshl_add_u32 v5, v3, 4, v5\nv_lshlrev_b32 v6, 4, v2")
    for kt in range(16): a(f"buffer_load_dwordx4 v[{64+4*kt}:{67+4*kt}], v5, s[48:51], 0 offen offset:{kt*64}")
    a("s_waitcnt vmcnt(0)\nv_mov_b32 v8, 0\nv_xor_b32 v10, 16, v2\nv_lshlrev_b32 v10, 2, v10\nv_xor_b32 v11, 32, v2\nv_lshlrev_b32 v11, 2, v11")
    for r in range(64,128): a(f"v_lshlrev_b32 v9, 16, v{r}\nv_add_f32 v8, v8, v9\nv_and_b32 v9, 0xffff0000, v{r}\nv_add_f32 v8, v8, v9")
    red="ds_bpermute_b32 v12, v10, v8\ns_waitcnt lgkmcnt(0)\nv_add_f32 v8, v8, v12\nds_bpermute_b32 v12, v11, v8\ns_waitcnt lgkmcnt(0)\nv_add_f32 v8, v8, v12\nv_mul_f32 v8, 0x3b000000, v8"
    a(red+"\nv_mov_b32 v13, v8\nv_mov_b32 v8, 0")
    for r in range(64,128): a(f"v_lshlrev_b32 v9, 16, v{r}\nv_sub_f32 v9, v9, v13\nv_fmac_f32 v8, v9, v9\nv_and_b32 v9, 0xffff0000, v{r}\nv_sub_f32 v9, v9, v13\nv_fmac_f32 v8, v9, v9")
    a(red+"\nv_add_f32 v8, 0x3727c5ac, v8\nv_sqrt_f32 v8, v8\ns_nop 0\nv_rcp_f32 v8, v8\ns_nop 0")
    for r in range(64,128): a(f"v_lshlrev_b32 v9, 16, v{r}\nv_sub_f32 v9, v9, v13\nv_mul_f32 v9, v9, v8\nv_and_b32 v12, 0xffff0000, v{r}\nv_sub_f32 v12, v12, v13\nv_mul_f32 v12, v12, v8\nv_cvt_pk_bf16_f32 v{r}, v9, v12")
    a("s_mov_b32 s6, s3\ns_mov_b32 s25, 0x3d922279\ns_mov_b32 s26, 0x40135761")
    lp=a.label('m1')
    a(f"{lp}:\ns_lshl_b32 s7, s6, 14\ns_add_u32 s7, s7, {WS_W1F}")
    for kt in range(16):
        if kt%4==0: a(f"s_add_u32 s8, s7, {kt//4*4096}")
        a(f"buffer_load_dwordx4 v[{128+4*kt}:{131+4*kt}], v6, s[48:51], s8 offen offset:{(kt%4)*1024}")
    a("s_lshl_b32 s8, s6, 5\nv_lshlrev_b32 v9, 1, v4\nbuffer_load_ushort v16, v9, s[56:59], s8 offen\ns_waitcnt vmcnt(0)\nv_lshlrev_b32 v16, 16, v16")
    for kt in range(16):
        c="0" if kt==0 else "v[20:23]"
        a(f"v_mfma_f32_16x16x32_bf16 v[20:23], v[{64+4*kt}:{67+4*kt}], v[{128+4*kt}:{131+4*kt}], {c}")
    a("s_nop 7\nv_mul_u32_u24 v9, 11072, v3\nv_lshl_add_u32 v9, v4, 1, v9\nv_add_u32 v9, s8, v9")
    for r in range(4):
        x=20+r
        a(f"""v_add_f32 v{x}, v{x}, v16
v_mul_f32 v12, v{x}, v{x}
v_fma_f32 v12, v12, s25, 1.0
v_mul_f32 v12, v12, v{x}
v_mul_f32 v12, s26, v12
v_exp_f32 v12, -v12
s_nop 0
v_add_f32 v12, 1.0, v12
v_rcp_f32 v12, v12
s_nop 0
v_mul_f32 v12, v12, v{x}
v_cvt_pk_bf16_f32 v12, v12, v12
ds_write_b16 v9, v12 offset:{r*2768}""")
    a(f"s_add_u32 s6, s6, 4\ns_cmp_lt_u32 s6, 86\ns_cbranch_scc1 {lp}\ns_waitcnt lgkmcnt(0)\ns_barrier")
    a("v_mul_u32_u24 v9, 2768, v4\nv_lshl_add_u32 v9, v3, 4, v9\ns_mov_b32 s6, 0\ns_mul_i32 s7, s3, %d\ns_add_u32 s7, s7, %d" % (8*43*1024, WS_W2F))
    lp2=a.label('m2')
    for t in range(8): a(f"v_mov_b32 v{32+4*t}, 0\nv_mov_b32 v{33+4*t}, 0\nv_mov_b32 v{34+4*t}, 0\nv_mov_b32 v{35+4*t}, 0")
    a(f"{lp2}:\nds_read_b128 v[16:19], v9")
    for t in range(8): a(f"s_add_u32 s8, s7, {t*43*1024}\nbuffer_load_dwordx4 v[{64+4*t}:{67+4*t}], v6, s[48:51], s8 offen")
    a("s_waitcnt vmcnt(0) lgkmcnt(0)")
    for t in range(8): a(f"v_mfma_f32_16x16x32_bf16 v[{32+4*t}:{35+4*t}], v[16:19], v[{64+4*t}:{67+4*t}], v[{32+4*t}:{35+4*t}]")
    a(f"v_add_u32 v9, 64, v9\ns_add_u32 s7, s7, 1024\ns_add_u32 s6, s6, 1\ns_cmp_lt_u32 s6, 43\ns_cbranch_scc1 {lp2}\ns_nop 7\ns_nop 7")
    a("s_lshl_b32 s8, s3, 8\nv_lshlrev_b32 v9, 1, v4\nv_lshlrev_b32 v14, 2, v3\nv_add_u32 v14, s5, v14\nv_lshlrev_b32 v14, 10, v14\nv_lshl_add_u32 v14, v4, 1, v14\nv_add_u32 v14, s8, v14\nv_add_u32 v14, %d, v14\ns_mov_b32 s9, 0xbfb8aa3b" % WS_G)
    for t in range(8):
        a(f"buffer_load_ushort v16, v9, s[60:63], s8 offen offset:{t*32}\ns_waitcnt vmcnt(0)\nv_lshlrev_b32 v16, 16, v16")
        for r in range(4):
            x=32+4*t+r
            a(f"""v_add_f32 v{x}, v{x}, v16
v_cvt_pk_bf16_f32 v{x}, v{x}, v{x}
v_lshlrev_b32 v{x}, 16, v{x}
v_mul_f32 v12, s9, v{x}
v_exp_f32 v12, v12
s_nop 0
v_add_f32 v12, 1.0, v12
v_rcp_f32 v12, v12
s_nop 0
v_mul_f32 v12, v12, v{x}
v_cvt_pk_bf16_f32 v12, v12, v12
buffer_store_short v12, v14, s[48:51], 0 offen offset:{r*1024+t*32}""")
    a("s_branch k3_end")
```

```python
from asmlib import *
from layout import *
def gen_k4(a):
    a("""k4_kernel:
s_cmp_ge_u32 s2, 512
s_cbranch_scc1 k4_end
s_load_dwordx2 s[32:33], s[0:1], 112
v_lshrrev_b32 v1, 6, v0
v_and_b32 v2, 63, v0
v_readfirstlane_b32 s3, v1""")
    a("s_waitcnt lgkmcnt(0)")
    srd(a,48,32,WS_BYTES)
    a("""v_lshrrev_b32 v3, 4, v2
v_and_b32 v4, 15, v2
v_and_b32 v5, 7, v2
s_lshl_b32 s4, s2, 2
s_add_u32 s4, s4, s3
s_lshr_b32 s12, s4, 5
s_and_b32 s5, s4, 31
s_lshl_b32 s13, s12, 5
v_add_u32 v8, s13, v4
v_lshlrev_b32 v8, 13, v8
v_lshl_add_u32 v8, v3, 4, v8
s_lshl_b32 s14, s5, 8""")
    for t in range(2):
        for kt in range(4):
            a(f"s_add_u32 s15, s14, {WS_KX+t*131072}\nbuffer_load_dwordx4 v[{32+(t*4+kt)*4}:{35+(t*4+kt)*4}], v8, s[48:51], s15 offen offset:{kt*64}")
            a(f"s_add_u32 s15, s14, {WS_QX+t*131072}\nbuffer_load_dwordx4 v[{64+(t*4+kt)*4}:{67+(t*4+kt)*4}], v8, s[48:51], s15 offen offset:{kt*64}")
    a("v_lshlrev_b32 v9, 13, v5\nv_lshl_add_u32 v9, v3, 4, v9\ns_lshl_b32 s15, s12, 16\ns_add_u32 s15, s15, s14\ns_add_u32 s15, s15, %d" % WS_KM)
    for kt in range(4): a(f"buffer_load_dwordx4 v[{16+4*kt}:{19+4*kt}], v9, s[48:51], s15 offen offset:{kt*64}")
    a("v_xor_b32 v10, 16, v2\nv_lshlrev_b32 v10, 2, v10\nv_xor_b32 v11, 32, v2\nv_lshlrev_b32 v11, 2, v11\ns_mov_b32 s24, 0x3e029e1e\ns_waitcnt vmcnt(0)")
    for qt in range(2):
        P=96+qt*8
        for t in range(3):
            for kt in range(4):
                kf=f"v[{16+4*kt}:{19+4*kt}]" if t==0 else f"v[{32+((t-1)*4+kt)*4}:{35+((t-1)*4+kt)*4}]"
                c="0" if kt==0 else f"v[{112+4*t}:{115+4*t}]"
                a(f"v_mfma_f32_16x16x32_bf16 v[{112+4*t}:{115+4*t}], {kf}, v[{64+(qt*4+kt)*4}:{67+(qt*4+kt)*4}], {c}")
        a("s_nop 7\nv_mov_b32 v12, 0xff800000\nv_cmp_gt_u32 vcc, 2, v3\ns_nop 1")
        for r in range(4): a(f"v_cndmask_b32 v{112+r}, v12, v{112+r}, vcc")
        for t in range(1,3):
            for r in range(4):
                a(f"v_lshl_add_u32 v13, v3, 2, {(t-1)*16+r}\nv_subrev_u32 v13, {qt*16}, v13\nv_cmp_ge_i32 vcc, v4, v13\ns_nop 1\nv_cndmask_b32 v{112+4*t+r}, v12, v{112+4*t+r}, vcc")
        a("v_max_f32 v9, v112, v113")
        for r in range(114,124): a(f"v_max_f32 v9, v9, v{r}")
        a("ds_bpermute_b32 v12, v10, v9\ns_waitcnt lgkmcnt(0)\nv_max_f32 v9, v9, v12\nds_bpermute_b32 v12, v11, v9\ns_waitcnt lgkmcnt(0)\nv_max_f32 v9, v9, v12")
        for r in range(112,124): a(f"v_sub_f32 v{r}, v{r}, v9\nv_mul_f32 v{r}, s24, v{r}\nv_exp_f32 v{r}, v{r}")
        a("s_nop 0\nv_add_f32 v9, v112, v113")
        for r in range(114,124): a(f"v_add_f32 v9, v9, v{r}")
        a("ds_bpermute_b32 v12, v10, v9\ns_waitcnt lgkmcnt(0)\nv_add_f32 v9, v9, v12\nds_bpermute_b32 v12, v11, v9\ns_waitcnt lgkmcnt(0)\nv_add_f32 v9, v9, v12\nv_rcp_f32 v9, v9\ns_nop 0")
        for r in range(112,124): a(f"v_mul_f32 v{r}, v{r}, v9")
        a(f"v_cvt_pk_bf16_f32 v{P}, v116, v117\nv_cvt_pk_bf16_f32 v{P+1}, v118, v119\nv_cvt_pk_bf16_f32 v{P+2}, v120, v121\nv_cvt_pk_bf16_f32 v{P+3}, v122, v123\nv_cvt_pk_bf16_f32 v{P+4}, v112, v113\nv_cvt_pk_bf16_f32 v{P+5}, v114, v115\nv_mov_b32 v{P+6}, 0\nv_mov_b32 v{P+7}, 0")
    a("s_lshl_b32 s15, s5, 7\nv_add_u32 v8, s15, v4\nv_lshlrev_b32 v13, 4, v8\nv_lshl_add_u32 v13, v3, 3, v13\nv_lshlrev_b32 v8, 12, v8\nv_lshl_add_u32 v8, v3, 3, v8\ns_lshl_b32 s16, s12, 6\ns_add_u32 s16, s16, %d\ns_lshl_b32 s17, s12, 16\ns_add_u32 s17, s17, %d\nv_mov_b32 v22, 0\nv_mov_b32 v23, 0" % (WS_VXT,WS_VMT))
    a("v_add_u32 v14, s13, v4\nv_lshlrev_b32 v14, 13, v14\nv_lshl_add_u32 v14, v3, 3, v14\ns_add_u32 s19, s14, %d" % WS_O)
    for et in range(8):
        a(f"s_add_u32 s18, s16, {et*65536}\nbuffer_load_dwordx2 v[16:17], v8, s[48:51], s18 offen\nbuffer_load_dwordx2 v[18:19], v8, s[48:51], s18 offen offset:32\nbuffer_load_dwordx2 v[20:21], v13, s[48:51], s17 offen offset:{et*256}\ns_waitcnt vmcnt(0)\nv_cmp_gt_u32 vcc, 2, v3\ns_nop 1\nv_cndmask_b32 v20, 0, v20, vcc\nv_cndmask_b32 v21, 0, v21, vcc\ns_nop 1")
        for qt in range(2):
            P=96+qt*8
            a(f"v_mfma_f32_16x16x32_bf16 v[24:27], v[16:19], v[{P}:{P+3}], 0\nv_mfma_f32_16x16x32_bf16 v[24:27], v[20:23], v[{P+4}:{P+7}], v[24:27]\ns_nop 7\ns_nop 1\nv_cvt_pk_bf16_f32 v28, v24, v25\nv_cvt_pk_bf16_f32 v29, v26, v27\ns_add_u32 s20, s19, {qt*131072}\nbuffer_store_dwordx2 v[28:29], v14, s[48:51], s20 offen offset:{et*32}\ns_nop 1")
    a("k4_end:\ns_endpgm")
```

```python
from asmlib import *
from layout import *
def gen_k5(a):
    a("""k5_kernel:
s_cmp_ge_u32 s2, 256
s_cbranch_scc1 k5_end
s_load_dwordx2 s[32:33], s[0:1], 112
s_load_dwordx2 s[34:35], s[0:1], 0
s_load_dwordx2 s[36:37], s[0:1], 96
v_lshrrev_b32 v1, 6, v0
v_and_b32 v2, 63, v0
v_readfirstlane_b32 s3, v1
s_waitcnt lgkmcnt(0)""")
    srd(a,48,32,WS_BYTES); srd(a,52,34,2097152); srd(a,56,36,2097152)
    a("""v_lshrrev_b32 v3, 4, v2
v_and_b32 v4, 15, v2
s_lshr_b32 s4, s2, 3
s_lshl_b32 s4, s4, 6
s_lshr_b32 s5, s3, 1
s_lshl_b32 s5, s5, 5
s_add_u32 s4, s4, s5
s_and_b32 s5, s2, 7
s_lshl_b32 s5, s5, 2
s_and_b32 s6, s3, 1
s_lshl_b32 s6, s6, 1
s_add_u32 s5, s5, s6
v_add_u32 v5, s4, v4
v_lshlrev_b32 v5, 13, v5
v_lshl_add_u32 v5, v3, 4, v5
v_add_u32 v5, %d, v5
v_lshlrev_b32 v6, 4, v2
s_lshl_b32 s7, s5, 17
s_add_u32 s7, s7, %d
s_mov_b32 s8, 0""" % (WS_O,WS_WOG))
    for i in range(16): a(f"v_mov_b32 v{64+i}, 0")
    lp=a.label('o')
    a(f"{lp}:")
    for k in range(4):
        a(f"buffer_load_dwordx4 v[{16+8*k}:{19+8*k}], v5, s[48:51], 0 offen offset:{k*64}\ns_add_u32 s9, s7, 131072\nv_add_u32 v7, 131072, v5\nbuffer_load_dwordx4 v[{20+8*k}:{23+8*k}], v7, s[48:51], 0 offen offset:{k*64}\nbuffer_load_dwordx4 v[{80+8*k}:{83+8*k}], v6, s[48:51], s7 offen offset:{k*1024}\nbuffer_load_dwordx4 v[{84+8*k}:{87+8*k}], v6, s[48:51], s9 offen offset:{k*1024}")
    a("s_waitcnt vmcnt(0)")
    for k in range(4):
        for i in range(2):
            for j in range(2):
                d=64+(i*2+j)*4
                a(f"v_mfma_f32_16x16x32_bf16 v[{d}:{d+3}], v[{16+8*k+4*i}:{19+8*k+4*i}], v[{80+8*k+4*j}:{83+8*k+4*j}], v[{d}:{d+3}]")
    a(f"v_add_u32 v5, 256, v5\ns_add_u32 s7, s7, 4096\ns_add_u32 s8, s8, 1\ns_cmp_lt_u32 s8, 32\ns_cbranch_scc1 {lp}\ns_nop 7\ns_nop 7")
    for i in range(2):
        for j in range(2):
            for r in range(4):
                d=64+(i*2+j)*4+r
                a(f"""v_lshl_add_u32 v8, v3, 2, {i*16+r}
v_add_u32 v8, s4, v8
v_lshlrev_b32 v8, 9, v8
s_add_u32 s9, s5, {j}
s_lshl_b32 s9, s9, 4
v_add_u32 v8, s9, v8
v_add_u32 v8, v4, v8
v_lshlrev_b32 v8, 1, v8
v_add_u32 v9, {WS_G}, v8
buffer_load_ushort v10, v9, s[48:51], 0 offen
buffer_load_ushort v11, v8, s[52:55], 0 offen
s_waitcnt vmcnt(0)
v_lshlrev_b32 v10, 16, v10
v_lshlrev_b32 v11, 16, v11
v_cvt_pk_bf16_f32 v{d}, v{d}, v{d}
v_lshlrev_b32 v{d}, 16, v{d}
v_mul_f32 v{d}, v{d}, v10
v_cvt_pk_bf16_f32 v{d}, v{d}, v{d}
v_lshlrev_b32 v{d}, 16, v{d}
v_add_f32 v{d}, v{d}, v11
v_cvt_pk_bf16_f32 v{d}, v{d}, v{d}
buffer_store_short v{d}, v8, s[56:59], 0 offen""")
    a("k5_end:\ns_endpgm")
```

```python
WS_BYTES=268435456
WS_XN=0
WS_G=0x200000
WS_WQKV=0x400000
WS_WOF=0x1000000
WS_WOG=0x1400000
WS_W1F=0x1800000
WS_W2F=0x1A00000
WS_QX=0x2000000
WS_KX=0x3000000
WS_VXT=0x4000000
WS_KM=0x5000000
WS_VMT=0x5400000
WS_O=0x6000000
WS_EX1=0x7000000
WS_EX2=0x7200000
K0_WG_RELAY=23232//4
```

```python
import sys
from asmlib import *
from layout import *
import k0,k2
HDR=open('recurrent_scan__memory_aug_recurrent_mem_tr__mixer_channel_mlp__prompt.s.ref').read().split('; Override')[0]
a=Asm()
kern=[]
def addk(name, genf, vgpr, accum=None, launch=None):
    a(f".globl {name}\n.p2align 8\n.type {name},@function")
    genf(a); kern.append((name,vgpr,accum))
launches=[]
addk('k0_kernel', k0.gen_k0, 32)
launches.append(f"; @launch kernel=k0_kernel grid=({K0_WG_RELAY+512},1,1) block=(256,1,1) lds=0")
addk('k2_kernel', k2.gen_k2, 512, 256)
launches.append("; @launch kernel=k2_kernel grid=(256,1,1) block=(256,1,1) lds=0")
try:
    import k3
    addk('k3_kernel', k3.gen_k3, 512, 256); launches.append(f"; @launch kernel=k3_kernel grid=(256,1,1) block=(256,1,1) lds={k3.LDS}")
    import k4
    addk('k4_kernel', k4.gen_k4, 128); launches.append("; @launch kernel=k4_kernel grid=(512,1,1) block=(256,1,1) lds=0")
    import k5
    addk('k5_kernel', k5.gen_k5, 128); launches.append("; @launch kernel=k5_kernel grid=(256,1,1) block=(256,1,1) lds=0")
except ImportError as e:
    print("partial build:", e)
out=HDR+'\n'.join(launches)+'\n.amdgcn_target "amdgcn-amd-amdhsa--gfx950"\n.text\n'+a.text()+'.section .rodata,"a"\n'
for n,v,ac in kern:
    out+='.p2align 6\n'+kdesc(n,v,accum=ac)
open('recurrent_scan__memory_aug_recurrent_mem_tr__mixer_channel_mlp__prompt.s','w').write(out)
print(len(out))
```

```python
from asmlib import *
from layout import *
LDS=150*1024
L_MEM=0; L_QK=8320; L_VMT=12544; L_O=14592; L_RED=16768; L_WO=20480
EX2ID=WS_EX2+0x8000

def wreg(f):
    return (f"a[{4*f}:{4*f+3}]" if f<64 else f"v[{128+4*(f-64)}:{131+4*(f-64)}]")

def st2(a, ins):
    l1=a.label('sl'); l2=a.label('sl')
    a(f"s_cmp_eq_u32 s60, 0\ns_cbranch_scc0 {l1}")
    for i in ins: a(i)
    a(f"s_branch {l2}\n{l1}:")
    for i in ins: a(i+" sc1")
    a(f"{l2}:")

def gen_k3(a):
    a("k3_kernel:")
    a("""s_cmp_ge_u32 s2, 256
s_cbranch_scc1 k3_end
s_load_dwordx2 s[32:33], s[0:1], 112
s_load_dwordx2 s[34:35], s[0:1], 8
v_lshrrev_b32 v1, 6, v0
v_and_b32 v2, 63, v0
v_readfirstlane_b32 s3, v1
s_waitcnt lgkmcnt(0)""")
    srd(a, 48, 32, WS_BYTES)
    srd(a, 52, 34, 8192)
    a("""v_lshrrev_b32 v3, 4, v2
v_and_b32 v4, 15, v2
s_and_b32 s4, s2, 7
s_cmp_lg_u32 s4, 0
s_cbranch_scc1 k3_mlp
s_lshr_b32 s5, s2, 3
s_getreg_b32 s6, hwreg(HW_REG_XCC_ID)
s_and_b32 s6, s6, 15
s_add_u32 s6, s6, 1
v_mov_b32 v5, s6
s_lshl_b32 s7, s5, 2
v_mov_b32 v6, s7
v_add_u32 v6, %d, v6
buffer_store_dword v5, v6, s[48:51], 0 offen sc1
v_lshlrev_b32 v6, 2, v2
v_and_b32 v6, 127, v6
v_add_u32 v6, %d, v6""" % (EX2ID,EX2ID))
    lp=a.label('idp')
    a(f"""{lp}:
buffer_load_dword v5, v6, s[48:51], 0 offen sc1
s_waitcnt vmcnt(0)
v_cmp_eq_u32 vcc, 0, v5
s_cmp_lg_u64 vcc, 0
s_cbranch_scc1 {lp}
v_cmp_ne_u32 vcc, s6, v5
s_cmp_lg_u64 vcc, 0
s_cselect_b32 s60, 1, 0""")
    a("s_mul_i32 s8, s3, 6\nv_lshlrev_b32 v6, 4, v2")
    for i in range(6):
        a(f"s_add_u32 s9, s8, {i}\ns_lshr_b32 s10, s9, 3\ns_lshl_b32 s10, s10, 8\ns_and_b32 s11, s9, 7\ns_add_u32 s10, s10, s11\ns_lshl_b32 s11, s5, 3\ns_add_u32 s10, s10, s11\ns_lshl_b32 s10, s10, 14\ns_add_u32 s10, s10, {WS_WQKV}")
        for kt in range(16):
            if kt%4==0: a(f"s_add_u32 s11, s10, {kt//4*4096}")
            a(f"buffer_load_dwordx4 {wreg(i*16+kt)}, v6, s[48:51], s11 offen offset:{(kt%4)*1024}")
    a("s_lshl_b32 s10, s5, 17\ns_add_u32 s10, s10, %d\nv_lshlrev_b32 v7, 4, v0" % WS_WOF)
    for c in range(4):
        for i in range(8):
            a(f"s_add_u32 s11, s10, {(c*8+i)*4096}\nbuffer_load_dwordx4 v[{64+4*i}:{67+4*i}], v7, s[48:51], s11 offen")
        a("s_waitcnt vmcnt(0)")
        a(f"v_add_u32 v10, {L_WO+c*32768}, v7")
        for i in range(8):
            a(f"ds_write_b128 v10, v[{64+4*i}:{67+4*i}] offset:{i*4096}")
    a("""v_lshrrev_b32 v8, 6, v0
v_mul_u32_u24 v8, 2080, v8
v_lshl_add_u32 v8, v2, 4, v8
v_add_u32 v8, %d, v8
v_lshlrev_b32 v9, 4, v2
v_lshl_add_u32 v9, v1, 11, v9
buffer_load_dwordx4 v[64:67], v9, s[52:55], 0 offen
buffer_load_dwordx4 v[68:71], v9, s[52:55], 0 offen offset:1024
s_waitcnt vmcnt(0)
ds_write_b128 v8, v[64:67]
ds_write_b128 v8, v[68:71] offset:1040
s_mov_b32 s12, 0
v_and_b32 v5, 7, v2""" % L_MEM)
    loop=a.label('k3_loop')
    a(f"{loop}:")
    a("""s_lshl_b32 s13, s12, 5
v_add_u32 v8, s13, v4
v_lshlrev_b32 v8, 13, v8
v_lshl_add_u32 v8, v3, 4, v8
s_lshl_b32 s14, s5, 8
s_add_u32 s14, s14, %d""" % WS_KX)
    for t in range(2):
        for kt in range(4):
            r=32+(t*4+kt)*4
            a(f"s_add_u32 s15, s14, {t*16*8192}\nbuffer_load_dwordx4 v[{r}:{r+3}], v8, s[48:51], s15 offen offset:{kt*64}")
    a("""s_lshl_b32 s15, s3, 5
s_lshl_b32 s16, s5, 7
s_add_u32 s15, s15, s16
v_add_u32 v8, s15, v4
v_lshlrev_b32 v8, 12, v8
v_lshl_add_u32 v8, v3, 3, v8
s_lshl_b32 s16, s12, 6
s_add_u32 s16, s16, %d""" % WS_VXT)
    for e2 in range(2):
        a(f"s_add_u32 s17, s16, {e2*65536}\nbuffer_load_dwordx2 v[{16+4*e2}:{17+4*e2}], v8, s[48:51], s17 offen\nbuffer_load_dwordx2 v[{18+4*e2}:{19+4*e2}], v8, s[48:51], s17 offen offset:32")
    a("s_waitcnt lgkmcnt(0)\ns_barrier")
    a("v_mul_u32_u24 v8, 1040, v5\nv_lshl_add_u32 v8, v3, 4, v8\nv_add_u32 v8, %d, v8" % L_MEM)
    for kt in range(16): a(f"ds_read_b128 v[{64+4*kt}:{67+4*kt}], v8 offset:{kt*64}")
    a("s_waitcnt lgkmcnt(0)")
    ends=a.label('qe')
    for w in range(4):
        nx=a.label('qw')
        a(f"s_cmp_lg_u32 s3, {w}\ns_cbranch_scc1 {nx}")
        for ip in range(3):
          for kt in range(16):
            for i in (2*ip,2*ip+1):
                t=w*6+i; mtx=t//8; A=8 if i%2==0 else 12
                c="0" if kt==0 else f"v[{A}:{A+3}]"
                m=f"v[{64+4*kt}:{67+4*kt}]"
                if mtx<2: a(f"v_mfma_f32_16x16x32_bf16 v[{A}:{A+3}], {wreg(i*16+kt)}, {m}, {c}")
                else: a(f"v_mfma_f32_16x16x32_bf16 v[{A}:{A+3}], {m}, {wreg(i*16+kt)}, {c}")
          a("s_nop 7")
          for i in (2*ip,2*ip+1):
            t=w*6+i; mtx=t//8; tin=t%8; A=8 if i%2==0 else 12
            a(f"v_cvt_pk_bf16_f32 v6, v{A}, v{A+1}\nv_cvt_pk_bf16_f32 v7, v{A+2}, v{A+3}")
            if mtx<2:
                a(f"v_mul_u32_u24 v1, 528, v4\nv_lshl_add_u32 v1, v3, 3, v1\nv_cmp_gt_u32 vcc, 8, v4\ns_and_saveexec_b64 s[20:21], vcc\nds_write_b64 v1, v[6:7] offset:{L_QK+mtx*256+tin*32}")
                if mtx==1:
                    a(f"v_lshlrev_b32 v1, 13, v4\nv_lshl_add_u32 v1, v3, 3, v1\ns_lshl_b32 s22, s12, 16\ns_lshl_b32 s23, s5, 8\ns_add_u32 s22, s22, s23\ns_add_u32 s22, s22, {WS_KM+tin*32}\nbuffer_store_dwordx2 v[6:7], v1, s[48:51], s22 offen")
                a("s_mov_b64 exec, -1")
            else:
                a(f"v_lshlrev_b32 v1, 4, v4\nv_lshl_add_u32 v1, v3, 3, v1\nv_cmp_gt_u32 vcc, 2, v3\ns_and_saveexec_b64 s[20:21], vcc\nds_write_b64 v1, v[6:7] offset:{L_VMT+tin*256}\ns_lshl_b32 s22, s12, 16\ns_lshl_b32 s23, s5, 11\ns_add_u32 s22, s22, s23\ns_add_u32 s22, s22, {WS_VMT+tin*256}\nbuffer_store_dwordx2 v[6:7], v1, s[48:51], s22 offen\ns_mov_b64 exec, -1")
            a("s_nop 1")
        a(f"s_branch {ends}\n{nx}:")
    a(f"{ends}:")
    a("s_cmp_eq_u32 s12, 63\ns_cbranch_scc1 k3_end")
    a("s_waitcnt lgkmcnt(0)\ns_barrier")
    a("v_mul_u32_u24 v8, 528, v5\nv_lshl_add_u32 v8, v3, 4, v8\nv_add_u32 v8, %d, v8" % L_QK)
    for kt in range(4): a(f"ds_read_b128 v[{64+4*kt}:{67+4*kt}], v8 offset:{kt*64}\nds_read_b128 v[{80+4*kt}:{83+4*kt}], v8 offset:{256+kt*64}")
    a("v_lshlrev_b32 v8, 4, v4\nv_lshl_add_u32 v8, v3, 3, v8\ns_lshl_b32 s15, s3, 9\nv_add_u32 v8, s15, v8\nds_read_b64 v[24:25], v8 offset:%d\nds_read_b64 v[28:29], v8 offset:%d\nv_mov_b32 v26, 0\nv_mov_b32 v27, 0\nv_mov_b32 v30, 0\nv_mov_b32 v31, 0" % (L_VMT, L_VMT+256))
    a("s_waitcnt vmcnt(0) lgkmcnt(0)\nv_cmp_gt_u32 vcc, 2, v3\ns_nop 1\nv_cndmask_b32 v24, 0, v24, vcc\nv_cndmask_b32 v25, 0, v25, vcc\nv_cndmask_b32 v28, 0, v28, vcc\nv_cndmask_b32 v29, 0, v29, vcc")
    for t in range(3):
        for kt in range(4):
            kf = f"v[{80+4*kt}:{83+4*kt}]" if t==0 else f"v[{32+((t-1)*4+kt)*4}:{35+((t-1)*4+kt)*4}]"
            c="0" if kt==0 else f"v[{96+4*t}:{99+4*t}]"
            a(f"v_mfma_f32_16x16x32_bf16 v[{96+4*t}:{99+4*t}], {kf}, v[{64+4*kt}:{67+4*kt}], {c}")
    a("s_nop 7\nv_cmp_gt_u32 vcc, 2, v3\nv_mov_b32 v8, 0xff800000\ns_nop 1")
    for r in range(4): a(f"v_cndmask_b32 v{96+r}, v8, v{96+r}, vcc")
    a("v_max_f32 v9, v96, v97")
    for r in range(98,108): a(f"v_max_f32 v9, v9, v{r}")
    a("v_xor_b32 v10, 16, v2\nv_lshlrev_b32 v10, 2, v10\nv_xor_b32 v11, 32, v2\nv_lshlrev_b32 v11, 2, v11")
    a("ds_bpermute_b32 v12, v10, v9\ns_waitcnt lgkmcnt(0)\nv_max_f32 v9, v9, v12\nds_bpermute_b32 v12, v11, v9\ns_waitcnt lgkmcnt(0)\nv_max_f32 v9, v9, v12")
    a("s_mov_b32 s24, 0x3e029e1e")
    for r in range(96,108): a(f"v_sub_f32 v{r}, v{r}, v9\nv_mul_f32 v{r}, s24, v{r}\nv_exp_f32 v{r}, v{r}")
    a("s_nop 0\nv_add_f32 v9, v96, v97")
    for r in range(98,108): a(f"v_add_f32 v9, v9, v{r}")
    a("ds_bpermute_b32 v12, v10, v9\ns_waitcnt lgkmcnt(0)\nv_add_f32 v9, v9, v12\nds_bpermute_b32 v12, v11, v9\ns_waitcnt lgkmcnt(0)\nv_add_f32 v9, v9, v12\nv_rcp_f32 v9, v9\ns_nop 0")
    for r in range(96,108): a(f"v_mul_f32 v{r}, v{r}, v9")
    a("""v_cvt_pk_bf16_f32 v108, v100, v101
v_cvt_pk_bf16_f32 v109, v102, v103
v_cvt_pk_bf16_f32 v110, v104, v105
v_cvt_pk_bf16_f32 v111, v106, v107
v_cvt_pk_bf16_f32 v112, v96, v97
v_cvt_pk_bf16_f32 v113, v98, v99
v_mov_b32 v114, 0
v_mov_b32 v115, 0
s_nop 1""")
    for e2 in range(2):
        a(f"v_mfma_f32_16x16x32_bf16 v[{116+4*e2}:{119+4*e2}], v[{16+4*e2}:{19+4*e2}], v[108:111], 0\nv_mfma_f32_16x16x32_bf16 v[{116+4*e2}:{119+4*e2}], v[{24+4*e2}:{27+4*e2}], v[112:115], v[{116+4*e2}:{119+4*e2}]")
    a("s_nop 7\ns_nop 1\nv_mul_u32_u24 v8, 272, v4\nv_lshl_add_u32 v8, v3, 3, v8\ns_lshl_b32 s15, s3, 6\nv_add_u32 v8, s15, v8\nv_cmp_gt_u32 vcc, 8, v4\ns_and_saveexec_b64 s[20:21], vcc")
    for e2 in range(2):
        a(f"v_cvt_pk_bf16_f32 v12, v{116+4*e2}, v{117+4*e2}\nv_cvt_pk_bf16_f32 v13, v{118+4*e2}, v{119+4*e2}\nds_write_b64 v8, v[12:13] offset:{L_O+e2*32}")
    a("s_mov_b64 exec, -1\ns_waitcnt lgkmcnt(0)\ns_barrier")
    a("v_mul_u32_u24 v8, 272, v5\nv_lshl_add_u32 v8, v3, 3, v8\nv_add_u32 v8, %d, v8" % L_O)
    for k in range(4): a(f"ds_read_b64 v[{64+4*k}:{65+4*k}], v8 offset:{k*64}\nds_read_b64 v[{66+4*k}:{67+4*k}], v8 offset:{k*64+32}")
    a("s_lshl_b32 s15, s3, 15\ns_add_u32 s15, s15, %d\nv_lshlrev_b32 v9, 4, v2\nv_add_u32 v9, s15, v9" % L_WO)
    a("s_and_b32 s16, s12, 1\ns_lshl_b32 s16, s16, 5\ns_add_u32 s16, s16, s5\ns_lshl_b32 s16, s16, 15\ns_lshl_b32 s17, s3, 10\ns_add_u32 s16, s16, s17\ns_add_u32 s16, s16, %d\ns_add_u32 s18, s12, 1" % WS_EX1)
    a("v_lshlrev_b32 v10, 12, v4\nv_lshl_add_u32 v10, v3, 5, v10")
    for np_ in range(4):
        for j in range(2):
            for k in range(4): a(f"ds_read_b128 v[{80+16*j+4*k}:{83+16*j+4*k}], v9 offset:{((2*np_+j)*4+k)*1024}")
        a("s_waitcnt lgkmcnt(0)")
        for k in range(4):
            for j in range(2):
                c="0" if k==0 else f"v[{112+4*j}:{115+4*j}]"
                a(f"v_mfma_f32_16x16x32_bf16 v[{112+4*j}:{115+4*j}], v[{80+16*j+4*k}:{83+16*j+4*k}], v[{64+4*k}:{67+4*k}], {c}")
        a("s_nop 7\nv_cmp_gt_u32 vcc, 8, v4\ns_and_saveexec_b64 s[20:21], vcc")
        for j in range(2):
            nt=2*np_+j; B=120
            a(f"v_mov_b32 v{B}, v{112+4*j}\nv_mov_b32 v{B+1}, s18\nv_mov_b32 v{B+2}, v{113+4*j}\nv_mov_b32 v{B+3}, s18\nv_mov_b32 v{B+4}, v{114+4*j}\nv_mov_b32 v{B+5}, s18\nv_mov_b32 v{B+6}, v{115+4*j}\nv_mov_b32 v{B+7}, s18")
            st2(a,[f"buffer_store_dwordx4 v[120:123], v10, s[48:51], s16 offen offset:{nt*128}", f"buffer_store_dwordx4 v[124:127], v10, s[48:51], s16 offen offset:{nt*128+16}"])
            a("s_nop 1")
        a("s_mov_b64 exec, -1")
    a("v_lshrrev_b32 v8, 3, v2\nv_lshlrev_b32 v8, 12, v8\nv_lshl_add_u32 v8, v5, 4, v8\ns_and_b32 s16, s12, 1\ns_lshl_b32 s16, s16, 5\ns_lshl_b32 s17, s3, 3\ns_add_u32 s16, s16, s17\ns_lshl_b32 s16, s16, 15\ns_lshl_b32 s17, s5, 7\ns_add_u32 s16, s16, s17\ns_add_u32 s16, s16, %d" % WS_EX1)
    p1=a.label('p1')
    a(f"{p1}:")
    for i in range(8): a(f"s_add_u32 s17, s16, {i*32768}\nbuffer_load_dwordx4 v[{64+4*i}:{67+4*i}], v8, s[48:51], s17 offen sc1")
    a("s_waitcnt vmcnt(0)\ns_mov_b64 s[22:23], -1")
    for i in range(8): a(f"v_cmp_eq_u32 vcc, s18, v{65+4*i}\ns_and_b64 s[22:23], s[22:23], vcc\nv_cmp_eq_u32 vcc, s18, v{67+4*i}\ns_and_b64 s[22:23], s[22:23], vcc")
    a(f"s_cmp_eq_u64 s[22:23], -1\ns_cbranch_scc0 {p1}")
    a("v_add_f32 v20, v64, v68\nv_add_f32 v21, v66, v70")
    for i in range(2,8): a(f"v_add_f32 v20, v20, v{64+4*i}\nv_add_f32 v21, v21, v{66+4*i}")
    a("v_lshlrev_b32 v11, 3, v0\nds_write_b64 v11, v[20:21] offset:%d\ns_waitcnt lgkmcnt(0)\ns_barrier" % L_RED)
    a("v_lshlrev_b32 v11, 3, v2")
    for i in range(4): a(f"ds_read_b64 v[{12+2*i}:{13+2*i}], v11 offset:{L_RED+512*i}")
    a("s_waitcnt lgkmcnt(0)\nv_add_f32 v12, v12, v14\nv_add_f32 v13, v13, v15\nv_add_f32 v12, v12, v16\nv_add_f32 v13, v13, v17\nv_add_f32 v12, v12, v18\nv_add_f32 v13, v13, v19\nv_cvt_pk_bf16_f32 v12, v12, v13\nv_mov_b32 v13, s18")
    a("s_and_b32 s16, s12, 1\ns_lshl_b32 s16, s16, 5\ns_add_u32 s17, s16, s5\ns_lshl_b32 s17, s17, 9\ns_add_u32 s17, s17, %d" % WS_EX2)
    sk=a.label('sk')
    a(f"s_cmp_lg_u32 s3, 0\ns_cbranch_scc1 {sk}")
    st2(a,["buffer_store_dwordx2 v[12:13], v11, s[48:51], s17 offen"])
    a(f"{sk}:")
    a("v_lshlrev_b32 v8, 6, v0\ns_lshl_b32 s16, s16, 9\ns_add_u32 s16, s16, %d" % WS_EX2)
    p2=a.label('p2')
    a(f"{p2}:")
    for i in range(4): a(f"buffer_load_dwordx4 v[{64+4*i}:{67+4*i}], v8, s[48:51], s16 offen offset:{16*i} sc1")
    a("s_waitcnt vmcnt(0)\ns_mov_b64 s[22:23], -1")
    for i in range(4): a(f"v_cmp_eq_u32 vcc, s18, v{65+4*i}\ns_and_b64 s[22:23], s[22:23], vcc\nv_cmp_eq_u32 vcc, s18, v{67+4*i}\ns_and_b64 s[22:23], s[22:23], vcc")
    a(f"s_cmp_eq_u64 s[22:23], -1\ns_cbranch_scc0 {p2}")
    a("v_mov_b32 v65, v66\nv_mov_b32 v66, v68\nv_mov_b32 v67, v70\nv_mov_b32 v68, v72\nv_mov_b32 v69, v74\nv_mov_b32 v70, v76\nv_mov_b32 v71, v78")
    a("v_and_b32 v8, 7, v0\nv_mul_u32_u24 v8, 1040, v8\nv_lshrrev_b32 v9, 3, v0\nv_lshl_add_u32 v8, v9, 5, v8\nv_add_u32 v8, %d, v8\nds_write_b128 v8, v[64:67]\nds_write_b128 v8, v[68:71] offset:16" % L_MEM)
    a("s_add_u32 s12, s12, 1\ns_branch %s" % loop)
    a("k3_mlp:")
    import k3m; k3m.gen(a)
    a("k3_end:\ns_endpgm")
```
